```python
import torch

def _softmax(x, axis=-1):
    return torch.softmax(x, dim=axis)
def _gelu(x):
    return torch.nn.functional.gelu(x, approximate="tanh")
def _silu(x):
    return torch.nn.functional.silu(x)
def _sigmoid(x):
    return torch.sigmoid(x)
def _layernorm(x, axis=-1, eps=1e-5):
    m = x.mean(dim=axis, keepdim=True)
    v = x.var(dim=axis, keepdim=True, unbiased=False)
    return (x - m) / torch.sqrt(v + eps)
def _scatter_add(tgt, idx, src, axis=0):
    return tgt.clone().index_add_(axis, idx, src)
def _segment_sum(src, seg, n):
    out = torch.zeros((n,) + src.shape[1:], dtype=src.dtype)
    return out.index_add_(0, seg, src)
def _pad(x, pw):
    flat = tuple(v for pair in reversed(pw) for v in pair)
    return torch.nn.functional.pad(x, flat)

kernel_name = 'standalone__depthwise_separable__vision'

def setup_inputs():

    _w = (lambda a: (lambda t: t.to(torch.bfloat16) if t.is_floating_point() else t)(torch.as_tensor(a)))
    H = W = 384
    C = 192
    k = 1
    return {
        "x": _w((lambda *s: torch.randn(*s, dtype=torch.bfloat16) * 0.05)(1, H, W, C)),
        "dw": _w((lambda *s: torch.randn(*s, dtype=torch.bfloat16) * 0.05)(k, k, C)),
        "pw": _w((lambda *s: torch.randn(*s, dtype=torch.bfloat16) * 0.05)(C, C)),
    }

def reference(x, dw, pw):
    B, H, W, C = x.shape
    k = dw.shape[0]
    pad = k // 2
    xp = _pad(x, ((0,0),(pad,pad),(pad,pad),(0,0)))
    out = torch.zeros_like(x)
    for i in range(k):
        for j in range(k):
            out = out + xp[:, i:i+H, j:j+W, :] * dw[i, j][None, None, None, :]
    return torch.einsum('bhwc,cd->bhwd', out, pw)
```

```python
HEADER = """; Kernarg layout for this problem (48 bytes, ptrs only, base s[0:1]):
"""
KNAME = "standalone__depthwise_separable__vision_kernel"

class Asm:
    def __init__(self):
        self.lines = []
    def __call__(self, s=""):
        for l in s.split("\n"):
            self.lines.append("    " + l.strip() if l.strip() and not l.strip().endswith(":") else l.strip())
    def c(self, s):
        self.lines.append("    ; " + s)
    def text(self):
        return "\n".join(self.lines) + "\n"

def vr(b, n=1):
    return f"v{b}" if n == 1 else f"v[{b}:{b+n-1}]"
def ar(b, n=1):
    return f"a{b}" if n == 1 else f"a[{b}:{b+n-1}]"
def sr(b, n=1):
    return f"s{b}" if n == 1 else f"s[{b}:{b+n-1}]"

def wrap(body, grid, block, lds, nvgpr, nsgpr, accum_offset=None, notes=""):
    if accum_offset is None:
        accum_offset = (nvgpr + 3) // 4 * 4
    s = HEADER
    for l in notes.strip("\n").split("\n"):
        if l.strip():
            s += "; " + l.strip() + "\n"
    s += f"; @launch grid=({grid},1,1) block=({block},1,1) lds={lds}\n"
    s += f""".amdgcn_target "amdgcn-amd-amdhsa--gfx950"
.text
.globl {KNAME}
.p2align 8
.type {KNAME},@function
{KNAME}:
"""
    s += body
    s += f""".section .rodata,"a"
.p2align 6
.amdhsa_kernel {KNAME}
  .amdhsa_next_free_vgpr {nvgpr}
  .amdhsa_next_free_sgpr {nsgpr}
  .amdhsa_accum_offset {accum_offset}
  .amdhsa_group_segment_fixed_size 0
  .amdhsa_kernarg_size 48
  .amdhsa_user_sgpr_count 2
  .amdhsa_user_sgpr_kernarg_segment_ptr 1
  .amdhsa_system_sgpr_workgroup_id_x 1
  .amdhsa_float_denorm_mode_32 3
.end_amdhsa_kernel
"""
    return s
```

```python
import sys
from asmlib import *

def gen(ldflag="", stflag=""):
    a = Asm()
    NWG = 256; NW = 12; PT = 3
    XB = 147456 * 384
    X0 = 0
    vTid = 0
    vXoff = 1
    vT = 2
    X0 = 4
    DW0 = 76
    WS0 = 100
    WP0 = 132
    vWr = 148
    vRd0 = 149
    vRd1 = 150
    vWoff = 151
    vDoff = 152
    ACC0 = 100
    FR0 = 124
    DT0 = 124
    OUT0 = 76
    NV = 156
    a("s_cmp_ge_u32 s2, %d" % NWG)
    a("s_cbranch_scc1 L_end")
    a("s_load_dwordx4 s[4:7], s[0:1], 0")
    a("s_load_dwordx4 s[8:11], s[0:1], 16")
    a("v_and_b32 v2, 63, v0")
    a("v_lshrrev_b32 v3, 6, v0")
    a("v_and_b32 v%d, 15, v2" % vXoff)
    a("v_lshrrev_b32 v2, 4, v2")
    a("s_mul_i32 s3, s2, 576")
    a("v_mul_u32_u24 v3, 48, v3")
    a("v_add3_u32 v%d, v%d, v3, s3" % (vXoff, vXoff))
    a("v_mul_u32_u24 v%d, 384, v%d" % (vXoff, vXoff))
    a("v_lshl_add_u32 v%d, v2, 4, v%d" % (vXoff, vXoff))
    a("v_lshlrev_b32 v%d, 4, v2" % vDoff)
    a("v_and_b32 v%d, 63, v0" % vRd0)
    a("v_lshlrev_b32 v%d, 4, v%d" % (vRd0, vRd0))
    a("v_add_u32 v%d, 0x10000, v%d" % (vRd1, vRd0))
    a("v_mul_u32_u24 v2, 2731, v0")
    a("v_lshrrev_b32 v2, 16, v2")
    a("v_mul_u32_u24 v3, 24, v2")
    a("v_sub_u32 v3, v0, v3")
    a("v_mul_u32_u24 v%d, 3072, v2" % vWoff)
    a("v_lshl_add_u32 v%d, v3, 4, v%d" % (vWoff, vWoff))
    a("v_lshrrev_b32 v%d, 2, v3" % vWr)
    a("v_mul_u32_u24 v%d, 12, v%d" % (vWr, vWr))
    a("v_lshrrev_b32 v%d, 2, v2" % WP0)
    a("v_add_u32 v%d, v%d, v%d" % (vWr, vWr, WP0))
    a("v_lshlrev_b32 v%d, 10, v%d" % (vWr, vWr))
    a("v_and_b32 v2, 3, v2")
    a("v_lshl_add_u32 v%d, v2, 8, v%d" % (vWr, vWr))
    a("v_and_b32 v3, 3, v3")
    a("v_lshl_add_u32 v%d, v3, 6, v%d" % (vWr, vWr))
    a("s_waitcnt lgkmcnt(0)")
    for (d, src, n) in ((12, 4, XB), (16, 6, 384), (20, 8, 73728), (24, 10, XB)):
        a(f"s_mov_b32 s{d}, s{src}")
        a(f"s_and_b32 s{d+1}, s{src+1}, 0xffff")
        a(f"s_mov_b32 s{d+2}, {n}")
        a(f"s_mov_b32 s{d+3}, 0x20000")
    a("s_mov_b32 s28, 6144")
    a("s_mov_b32 s29, 12288")
    a("s_mov_b32 s30, 0x05040100")
    a("s_mov_b32 s31, 0x07060302")
    a("s_mov_b32 s32, 0xffff0000")
    soff = ["0", "s28", "s29"]
    for r in range(8):
        a(f"buffer_load_dwordx4 {vr(WS0+4*r,4)}, v{vWoff}, s[20:23], 0 offen offset:{r*384}")
    for kk in range(6):
        a(f"buffer_load_dwordx4 {vr(DW0+4*kk,4)}, v{vDoff}, s[16:19], 0 offen offset:{kk*64}")
    for kk in range(6):
        for pt in range(PT):
            a(f"buffer_load_dwordx4 {vr(X0+(pt*6+kk)*4,4)}, v{vXoff}, s[12:15], {soff[pt]} offen offset:{kk*64} {ldflag}")
    a("v_cmp_gt_u32 vcc, 576, v0")
    a("s_waitcnt vmcnt(24)")
    a("s_and_saveexec_b64 s[34:35], vcc")
    a("s_cbranch_execz L_wdone")
    for e in range(8):
        q = WP0 + 4 * (e % 4)
        sel = "s30" if e % 2 == 0 else "s31"
        for p in range(4):
            a(f"v_perm_b32 v{q+p}, v{WS0+4*(2*p+1)+e//2}, v{WS0+4*(2*p)+e//2}, {sel}")
        t, r = e >> 2, e & 3
        a(f"ds_write_b128 v{vWr}, {vr(q,4)} offset:{t*6144+r*16}")
    a("L_wdone:")
    a("s_mov_b64 exec, s[34:35]")
    a("s_waitcnt lgkmcnt(0)")
    a("s_barrier")
    for kk in range(6):
        a(f"s_waitcnt vmcnt({18-3*(kk+1)})")
        for d in range(4):
            a(f"v_lshlrev_b32 v{DT0+2*d}, 16, v{DW0+4*kk+d}")
            a(f"v_and_b32 v{DT0+2*d+1}, s32, v{DW0+4*kk+d}")
        for pt in range(PT):
            xb = X0 + (pt*6+kk)*4
            T = 132
            for d in range(4):
                a(f"v_lshlrev_b32 v{T+2*d}, 16, v{xb+d}")
                a(f"v_and_b32 v{T+2*d+1}, s32, v{xb+d}")
            for d in range(4):
                a(f"v_pk_mul_f32 {vr(T+2*d,2)}, {vr(T+2*d,2)}, {vr(DT0+2*d,2)}")
            for d in range(4):
                a(f"v_cvt_pk_bf16_f32 v{xb+d}, v{T+2*d}, v{T+2*d+1}")
    def rd(f, slot):
        addr = f * 1024
        if addr < 65536:
            a(f"ds_read_b128 {vr(FR0+4*slot,4)}, v{vRd0} offset:{addr}")
        else:
            a(f"ds_read_b128 {vr(FR0+4*slot,4)}, v{vRd1} offset:{addr-65536}")
    seq = [(g, kk, t) for g in range(6) for kk in range(6) for t in range(2)]
    fidx = lambda g, kk, t: (g*2+t)*6+kk
    NS = 6; PF = 4
    for n in range(PF):
        rd(fidx(*seq[n]), n % NS)
    for n, (g, kk, t) in enumerate(seq):
        if n + PF < len(seq):
            rd(fidx(*seq[n+PF]), (n+PF) % NS)
            a(f"s_waitcnt lgkmcnt({PF})")
        else:
            a(f"s_waitcnt lgkmcnt({len(seq)-1-n})")
        for pt in range(PT):
            acc = ACC0 + (t*3+pt)*4
            c = "0" if kk == 0 else vr(acc, 4)
            a(f"v_mfma_f32_16x16x32_bf16 {vr(acc,4)}, {vr(FR0+4*(n%NS),4)}, {vr(X0+(pt*6+kk)*4,4)}, {c}")
        if kk == 5 and t == 1:
            a("s_nop 7")
            for pt in range(PT):
                o = OUT0 + ((g % 2)*3+pt)*4
                for tt in range(2):
                    acc = ACC0 + (tt*3+pt)*4
                    a(f"v_cvt_pk_bf16_f32 v{o+2*tt}, v{acc}, v{acc+1}")
                    a(f"v_cvt_pk_bf16_f32 v{o+2*tt+1}, v{acc+2}, v{acc+3}")
                a(f"buffer_store_dwordx4 {vr(o,4)}, v{vXoff}, s[24:27], {soff[pt]} offen offset:{g*64} {stflag}")
            a("s_nop 1")
    a("L_end:")
    a("s_endpgm")
    return wrap(a.text(), NWG, NW*64, 73728, NV, 40)

if __name__ == "__main__":
    for t in range(768):
        assert (t*2731) >> 16 == t // 24
    out = sys.argv[1]
    kw = dict(x.split("=") for x in sys.argv[2:])
    open(out, "w").write(gen(**kw))
```

```python
import sys
from asmlib import *
def gen(mode="0", nld="1", ns="56", op="st", fl="sc1", hfl="nt", w="4"):
    fl = fl.replace("+", " "); hfl = hfl.replace("+", " "); w = int(w)
    mode = int(mode); nld = int(nld); NS = int(ns)
    a = Asm()
    a("s_cmp_ge_u32 s2, 256"); a("s_cbranch_scc1 L_end")
    a("s_load_dwordx2 s[4:5], s[0:1], 0"); a("s_load_dwordx2 s[6:7], s[0:1], 24"); a("s_load_dwordx2 s[8:9], s[0:1], 40")
    a("v_lshrrev_b32 v1, 6, v0"); a("v_and_b32 v2, 63, v0"); a("v_readfirstlane_b32 s3, v1")
    a("v_lshlrev_b32 v3, 4, v0"); a("v_lshlrev_b32 v4, 4, v2")
    for i in range(8, 12): a(f"v_mov_b32 v{i}, v0")
    a("s_waitcnt lgkmcnt(0)")
    for (d, src, n) in ((12, 4, 56623104), (16, 6, 56623104), (20, 8, 268435456)):
        a(f"s_mov_b32 s{d}, s{src}"); a(f"s_and_b32 s{d+1}, s{src+1}, 0xffff"); a(f"s_mov_b32 s{d+2}, {n}"); a(f"s_mov_b32 s{d+3}, 0x20000")
    a("s_cmp_ge_u32 s2, 248"); a("s_cbranch_scc1 L_test")
    a("s_mul_i32 s24, s2, 0x80000"); a("s_add_u32 s24, s24, 0x1000000"); a("s_mov_b32 s25, 0")
    a("L_fl:")
    a("buffer_store_dwordx4 v[8:11], v3, s[20:23], s24 offen sc1"); a("s_waitcnt vmcnt(2)")
    a("s_add_u32 s24, s24, 4096"); a("s_add_u32 s25, s25, 1"); a("s_cmp_lt_u32 s25, 128"); a("s_cbranch_scc1 L_fl")
    a("s_branch L_end")
    a("L_test:")
    a("s_sub_u32 s26, s2, 248"); a("s_lshl_b32 s26, s26, 2"); a("s_add_u32 s26, s26, s3")
    a("s_lshl_b32 s27, s26, 17")
    a("s_memrealtime s[30:31]"); a("s_waitcnt lgkmcnt(0)")
    a("L_sp:"); a("s_memrealtime s[32:33]"); a("s_waitcnt lgkmcnt(0)"); a("s_sub_u32 s32, s32, s30"); a("s_cmp_lt_u32 s32, 300"); a("s_cbranch_scc1 L_sp")
    a("buffer_store_dwordx4 v[8:11], v4, s[16:19], s27 offen sc1"); a("buffer_load_dwordx4 v[12:15], v4, s[12:15], s27 offen"); a("s_waitcnt vmcnt(0)")
    a("s_mov_b32 s28, s27"); a("s_mov_b32 m0, 0"); a("v_lshlrev_b32 v6, 2, v2")
    a("s_barrier")
    if mode in (0, 2): a("s_cmp_ge_u32 s3, 2"); a("s_cbranch_scc1 L_end")
    a("s_add_u32 s27, s27, 0x4000")
    a("s_memrealtime s[30:31]"); a("s_waitcnt lgkmcnt(0)")
    if mode == 0: a("s_cmp_lg_u32 s3, 0"); a("s_cbranch_scc1 L_nl")
    if mode != 2:
        for i in range(nld): a(f"buffer_load_dwordx4 v[{16+4*i}:{19+4*i}], v4, s[12:15], s27 offen offset:{1024*(i%4)} {hfl}"); a("s_add_u32 s27, s27, 4096") if i % 4 == 3 else None
    a("L_nl:")
    for i in range(NS):
        a("s_add_u32 s27, s27, 1024")
        if op == "st": a(f"buffer_store_dwordx4 v[8:11], v4, s[16:19], s27 offen {fl}" if w == 4 else f"buffer_store_dword v8, v6, s[16:19], s27 offen {fl}")
        if op == "ld": a(f"buffer_load_dwordx4 v[60:63], v4, s[12:15], s28 offen {fl}")
        if op == "lds": a(f"buffer_load_dwordx4 v4, s[12:15], s28 offen {fl} lds")
        a("s_memrealtime s[32:33]"); a("s_waitcnt lgkmcnt(0)"); a("s_sub_u32 s32, s32, s30"); a(f"v_writelane_b32 v5, s32, {i}")
    a(f"s_waitcnt vmcnt({min(NS,63)})"); a("s_memrealtime s[32:33]"); a("s_waitcnt lgkmcnt(0)"); a("s_sub_u32 s32, s32, s30"); a(f"v_writelane_b32 v5, s32, 62")
    a("s_waitcnt vmcnt(0)"); a("s_memrealtime s[32:33]"); a("s_waitcnt lgkmcnt(0)"); a("s_sub_u32 s32, s32, s30"); a(f"v_writelane_b32 v5, s32, 63")
    a("s_lshl_b32 s26, s26, 8"); a("s_add_u32 s26, s26, 0x200000"); a("v_lshlrev_b32 v4, 2, v2")
    a("buffer_store_dword v5, v4, s[20:23], s26 offen")
    a("L_end:"); a("s_endpgm")
    return wrap(a.text(), 256, 256, 4096, 128, 48)
if __name__ == "__main__":
    kw = dict(x.split("=") for x in sys.argv[2:]); open(sys.argv[1], "w").write(gen(**kw))
```

```python
import sys
from asmlib import *

class DS:
    def __init__(self, a): self.a = a; self.n = 0; self.done = 0
    def op(self, s): self.a(s); self.n += 1; return self.n
    def need(self, k):
        if k > self.done:
            w = min(self.n - k, 15)
            self.a(f"s_waitcnt lgkmcnt({w})"); self.done = self.n - w
    def reset(self): self.n = 0; self.done = 0

class VM(list):
    def after(self, names):
        last = max(i for i, (n, c) in enumerate(self) if n in names)
        return sum(c for n, c in self[last+1:])

NOTES = """
out[p,:] = bf16( bf16(x[p,:] * dw) @ pw ),  147456 pixels x 192 channels, HBM bound.
256 workgroups (one per CU) x 4 waves; a wave owns 16-pixel tiles (6 KiB), 9 each.
 - pw^T lives in 288 registers per lane (MFMA A operands), read once from an LDS image with ds_read_b64_tr_b16.
 - x tiles arrive by LDS-DMA in a 5-slot ring per wave (16-byte pieces xor-swizzled inside each 128-byte line),
   are read as MFMA B operands, multiplied by dw in f32 and rounded to bf16 exactly as the reference does.
 - results go through LDS so that every global store instruction writes whole 128-byte lines.
 - the tile loop is software pipelined: each MFMA is followed by at most one memory/scalar op and two VALU ops.
Memory locality (speed only): the two IO dies interleave the address space in 8 KiB blocks. Workgroups b and b^4 share
432 KiB of pixels; wave 0 times two scalar loads to see which half of the blocks is near, the pair settles who takes
which half with one atomic on d_debug (first claim wins, the other workgroup takes the complement), so every tile is
computed exactly once whatever the placement or the outcome of the timing.
"""

def gen(ldflag="nt", stflag="sc1", stamp="0", pf="1", dist="4", numa="2", ldslot="16", trips="3", thresh="64",
        park="1", stag="0", l1="pre", late="1", dwdma="1", w0l1="1", hack2="0", tlb="0", onewait="1", na="6", bpos="1", barfrom="0", deep="0", ob="0", ntk="0", ntf="nt"):
    ntk = int(ntk); ntf = ntf.replace("+", " ")
    deep = int(deep); ob = int(ob) or deep
    barfrom = int(barfrom)
    na = int(na); bpos = int(bpos)
    onewait = int(onewait)
    tlb = int(tlb)
    hack2 = int(hack2)
    dwdma = int(dwdma); w0l1 = int(w0l1)
    ldflag = ldflag.replace("+", " "); stflag = stflag.replace("+", " ")
    stamp, pf, dist, numa, ldslot, trips, thresh, park, stag, late = map(int, (stamp, pf, dist, numa, ldslot, trips, thresh, park, stag, late))
    a = Asm(); ds = DS(a); C = a.c
    NWG = 256; NW = 4; NT = 9; KST = 3; D = 5
    XB = 147456 * 384
    RING = 24576; RSZ = D * 6144
    FLAG = RING + NW * RSZ
    DWL = FLAG + 128
    LDS = FLAG + 64 if not dwdma else DWL + NW * 1024
    PER = 49152
    vG = 2; vB0, vB1 = 8, 9; vBa, vBb = 10, 11; vO = 12; vL = 16; vTR = 17; vA = 21
    vT = 22; vE = 38
    DW = 47; BS = 96; R = 120; ACC = 144; OUT = 192; WV = 216
    vGW = ACC; DWP = OUT
    t0, t1, t2, t3 = vT, vT+1, vT+2, vT+3
    sW, sLSlot, sU, sSlot, sRing, sT, sMask, sTmp, sTmp2, sM0 = 28, 29, 30, 31, 32, 33, 34, 35, 36, 37
    sReg, sTA, sTB, sCls, sBit, sPair = 40, 41, 42, 43, 44, 45
    OFF = 48
    sP = 58
    def wreg(nt, kk, off=0, n=4):
        f = nt * 6 + kk
        return ar(4*f+off, n) if f < 64 else vr(WV + 4*(f-64) + off, n)
    def STAMP(i):
        if stamp == -1:
            if i in (0, 7): a(f"s_memrealtime s[{64+2*i}:{65+2*i}]")
        elif stamp: a(f"s_memrealtime s[{64+2*i}:{65+2*i}]"); a("s_waitcnt lgkmcnt(0)")
    def LSTAMP(k):
        if stamp >= 2:
            return ["s_memrealtime s[90:91]\n" + f"s_mul_i32 s92, s{sT}, 4\ns_add_u32 m0, s92, {k}\ns_waitcnt lgkmcnt(0)\nv_writelane_b32 v250, s90, m0"]
        return []
    def emit(ops):
        for o in ops:
            if callable(o): o()
            else: a(o)
    def srd(d, src, n):
        a(f"s_mov_b32 s{d}, s{src}"); a(f"s_and_b32 s{d+1}, s{src+1}, 0xffff"); a(f"s_mov_b32 s{d+2}, {n}"); a(f"s_mov_b32 s{d+3}, 0x20000")
    def dma_ops(srd_, vbase, soff, m0reg, m0add, flag):
        o = []
        for h in range(2):
            add = m0add + 3072*h
            o += [(f"s_add_u32 m0, s{m0reg}, {add}" if add else f"s_mov_b32 m0, s{m0reg}") + "\ns_nop 0"]
            o += [f"buffer_load_dwordx4 v{vbase+i}, {srd_}, s{soff} offen offset:{1024*(i%3)} {flag} lds".replace("  ", " ") for i in range(3*h, 3*h+3)]
        return o
    def xload(vm, k):
        emit(dma_ops("s[12:15]", vG, OFF+k, sRing, (k % D)*6144, ldflag)); vm.append((f"L{k}", 6))
    def prefetch_code():
        C("pull the kernel's own code towards L2 (value unused)")
        a("s_getpc_b64 s[38:39]")
        a(f"v_lshlrev_b32 v{vE+1}, 7, v0")
        a(f"global_load_dword v{vE}, v{vE+1}, s[38:39]")
    STAMP(0)
    a(f"s_cmp_ge_u32 s2, {NWG}")
    a("s_cbranch_scc1 L_end")
    a("s_load_dwordx8 s[4:11], s[0:1], 0")
    a("s_load_dwordx2 s[62:63], s[0:1], 32")
    a("v_lshrrev_b32 v1, 6, v0")
    a("v_and_b32 v0, 63, v0")
    a(f"v_readfirstlane_b32 s{sW}, v1")
    base = VM()
    if pf == 1: prefetch_code(); base.append(("p", 1))
    C("per-lane byte offsets inside a 6 KiB tile: piece i covers lines 8i..8i+7, row j = line/3, 16-byte piece index ^ f(j)")
    a(f"v_lshrrev_b32 v{t0}, 3, v0")
    a(f"v_and_b32 v{t1}, 7, v0")
    a(f"v_mul_u32_u24 v{t2}, 86, v{t0}")
    for i in range(3):
        if i: a(f"v_add_u32 v{t2}, {8*86}, v{t2}")
        a(f"v_lshrrev_b32 v{vGW+i}, 8, v{t2}")
        a(f"v_xor_b32 v{t3}, v{vGW+i}, v{t1}")
        a(f"v_lshlrev_b32 v{t3}, 4, v{t3}")
        a(f"v_lshl_add_u32 v{vG+i}, v{t0}, 7, v{t3}")
        a(f"v_xor_b32 v{vG+3+i}, 0x50, v{vG+i}")
        a(f"v_add_u32 v{vG+3+i}, 3072, v{vG+3+i}")
    C("pair = (b>>3)*4 + (b&3), member = (b>>2)&1; the first three rounds are split by member")
    a(f"s_lshr_b32 s{sPair}, s2, 3"); a(f"s_lshl_b32 s{sPair}, s{sPair}, 2"); a(f"s_and_b32 s{sTmp}, s2, 3"); a(f"s_add_u32 s{sPair}, s{sPair}, s{sTmp}")
    a(f"s_mul_i32 s{sReg}, s{sPair}, {9*PER}")
    a(f"s_and_b32 s{sTmp}, s2, 4"); a(f"s_add_u32 s{sTmp}, s{sTmp}, s{sW}"); a(f"s_mul_i32 s{sTmp}, s{sTmp}, 6144")
    a(f"s_add_u32 s{OFF}, s{sReg}, s{sTmp}")
    a(f"s_mul_i32 s{sRing}, s{sW}, {RSZ}")
    a(f"s_add_u32 s{sRing}, s{sRing}, {RING}")
    a("s_waitcnt lgkmcnt(0)")
    STAMP(1)
    srd(12, 4, XB)
    xload(base, 0)
    if pf == 2: prefetch_code(); base.append(("p", 1))
    srd(16, 6, 384); srd(20, 8, 73728); srd(24, 10, XB)
    if tlb:
        C("touch the first and last page of this pair's range (address translation only, values unused)")
        a(f"v_and_b32 v{t2}, 1, v0"); a(f"v_mul_u32_u24 v{t2}, {9*PER-4}, v{t2}")
        a(f"buffer_load_dword v{vE+2}, v{t2}, s[24:27], s{sReg} offen")
        if tlb == 1: a(f"buffer_load_dword v{vE+3}, v{t2}, s[12:15], s{sReg} offen")
        base.append(("t", 2 if tlb == 1 else 1))
    if dwdma:
        a(f"s_lshl_b32 s{sBit}, s{sW}, 10"); a(f"s_add_u32 m0, s{sBit}, {DWL}"); a(f"v_lshlrev_b32 v{t2}, 4, v0")
        a(f"buffer_load_dwordx4 v{t2}, s[16:19], 0 offen lds")
        base.append(("d", 1))
    else:
        a(f"v_lshrrev_b32 v{t2}, 4, v0")
        a(f"v_lshlrev_b32 v{t2}, 4, v{t2}")
        for kk in range(6): a(f"buffer_load_dwordx4 {vr(DWP+4*kk,4)}, v{t2}, s[16:19], 0 offen offset:{kk*64}")
        base.append(("d", 6))
    for t in range(1, KST if numa else NT): a(f"s_add_u32 s{OFF+t}, s{OFF-1+t}, {PER}")
    vm0 = VM(base); vm1 = VM(base)
    def claim():
        C("set my class bit in the pair's field of d_debug; vA <- previous word")
        a(f"s_and_b32 s{sTmp}, s{sPair}, 63"); a(f"s_lshl_b32 s{sTmp}, s{sTmp}, 2")
        a(f"s_lshr_b32 s{sTmp2}, s{sPair}, 6"); a(f"s_lshl_b32 s{sTmp2}, s{sTmp2}, 1"); a(f"s_add_u32 s{sTmp2}, s{sTmp2}, s{sCls}")
        a(f"s_lshl_b32 s{sBit}, 1, s{sTmp2}")
        a(f"v_mov_b32 v{vBa}, s{sTmp}"); a(f"v_mov_b32 v{vBb}, s{sBit}")
        a("s_mov_b64 exec, 1")
        a(f"global_atomic_or v{vA}, v{vBa}, v{vBb}, s[62:63] sc0")
        a("s_mov_b64 exec, -1")
    a(f"s_cmp_lg_u32 s{sW}, 0")
    a("s_cbranch_scc1 L_wload")
    C("---- wave 0: which 8 KiB blocks are near? (scalar loads return in order: a gap means the first one was the near one)")
    if l1 == "pre" and w0l1: xload(vm0, 1)
    if numa == 2:
        a(f"s_add_u32 s{sP}, s{sReg}, {5*PER+16383}"); a(f"s_add_u32 s{sP}, s4, s{sP}"); a(f"s_addc_u32 s{sP+1}, s5, 0"); a(f"s_and_b32 s{sP}, s{sP}, 0xffffc000")
        a(f"s_and_b32 s60, s2, 4"); a("s_lshl_b32 s60, s60, 7"); a(f"s_add_u32 s{sP}, s{sP}, s60")
        for k in range(trips):
            o1, o2 = (k*1024, k*1024+8192) if k % 2 == 0 else (k*1024+8192, k*1024)
            a(f"s_load_dword s60, s[{sP}:{sP+1}], {o1}"); a(f"s_load_dword s61, s[{sP}:{sP+1}], {o2}")
            a(f"s_mov_b32 s{sCls}, {k & 1}")
            a("s_waitcnt lgkmcnt(1)"); a("s_memtime s[38:39]"); a("s_waitcnt lgkmcnt(0)"); a("s_memtime s[60:61]"); a("s_waitcnt lgkmcnt(0)")
            a("s_sub_u32 s60, s60, s38")
            a(f"s_cmp_gt_u32 s60, {thresh}")
            a("s_cbranch_scc1 L_found")
        C("no clear answer: claim later, after the partner had its chance")
        a(f"s_mov_b32 s{sBit}, 0")
        if stamp: a("s_mov_b32 s84, 0")
        a("s_branch L_probed")
        a("L_found:")
        a(f"s_bfe_u32 s{sTmp}, s{sP}, 0x10015"); a(f"s_xor_b32 s{sCls}, s{sCls}, s{sTmp}")
        if stamp: a(f"s_add_u32 s84, s{sCls}, 2")
        claim()
        a("L_probed:")
    if l1 == "pre" and not w0l1: xload(vm0, 1)
    a("s_branch L_wdone")
    a("L_wload:")
    C("---- waves 1..3: pw -> LDS image, 16-row units; rows 0..63 sit in the output staging area, the rest in ring slots 3,4")
    for i in range(3):
        a(f"v_and_b32 v{t3}, 2, v{vGW+i}")
        a(f"v_xor_b32 v{t3}, v{t3}, v{t1}")
        a(f"v_lshlrev_b32 v{t3}, 4, v{t3}")
        a(f"v_lshl_add_u32 v{vGW+i}, v{t0}, 7, v{t3}")
        a(f"v_xor_b32 v{vGW+3+i}, 64, v{vGW+i}")
        a(f"v_add_u32 v{vGW+3+i}, 3072, v{vGW+3+i}")
    a(f"s_lshl_b32 s{sU}, s{sW}, 2"); a(f"s_sub_u32 s{sU}, s{sU}, 4")
    a(f"s_mul_i32 s{sTmp}, s{sU}, 6144")
    a(f"s_lshr_b32 s{sTmp2}, s{sU}, 1"); a(f"s_mul_i32 s{sTmp2}, s{sTmp2}, {RSZ}"); a(f"s_sub_u32 s{sTmp2}, s{sTmp2}, {2*RSZ-RING-18432}")
    a(f"s_mov_b32 s{sU}, {RSZ-6144}")
    a(f"s_cmp_eq_u32 s{sW}, 1"); a(f"s_cselect_b32 s{sM0}, 0, s{sTmp2}"); a(f"s_cselect_b32 s{sU}, 6144, s{sU}")
    for u in range(4):
        emit(dma_ops("s[20:23]", vGW, sTmp, sM0, 0, "")); vm1.append(("W", 6))
        if u < 3:
            a(f"s_add_u32 s{sTmp}, s{sTmp}, 6144")
            a(f"s_add_u32 s{sM0}, s{sM0}, " + (f"s{sU}" if u == 1 else "6144"))
    if l1 == "pre": xload(vm1, 1)
    a("L_wdone:")
    STAMP(2)
    C("---- LDS addresses: B-operand reads, output staging writes / linear reads, transposed pw reads")
    a(f"v_lshrrev_b32 v{t0}, 4, v0")
    a(f"v_and_b32 v{t1}, 15, v0")
    a(f"v_lshrrev_b32 v{t3}, 3, v{t1}")
    a(f"v_mul_u32_u24 v{t3}, 13, v{t3}")
    a(f"v_xor_b32 v{t3}, v{t3}, v{t1}")
    a(f"v_mul_u32_u24 v{t1}, 384, v{t1}")
    a(f"v_xor_b32 v{t2}, v{t0}, v{t3}")
    a(f"v_lshl_add_u32 v{vB0}, v{t2}, 4, v{t1}")
    a(f"v_add_u32 v{vB0}, s{sRing}, v{vB0}")
    a(f"v_xor_b32 v{vB1}, 64, v{vB0}")
    a(f"v_lshrrev_b32 v{t2}, 1, v{t0}")
    a(f"v_xor_b32 v{t2}, v{t2}, v{t3}")
    a(f"v_lshl_add_u32 v{vO}, v{t2}, 4, v{t1}")
    a(f"v_and_b32 v{t2}, 1, v{t0}")
    a(f"v_lshl_add_u32 v{vO}, v{t2}, 3, v{vO}")
    a(f"s_mul_i32 s{sTmp}, s{sW}, 6144")
    a(f"v_add_u32 v{vO}, s{sTmp}, v{vO}")
    for k in range(1, 4): a(f"v_xor_b32 v{vO+k}, {32*k}, v{vO}")
    a(f"v_lshlrev_b32 v{vL}, 4, v0")
    a(f"v_add_u32 v{vL}, s{sTmp}, v{vL}")
    a(f"v_bfe_u32 v{t1}, v0, 2, 2")
    a(f"v_lshl_add_u32 v{t2}, v{t0}, 3, v{t1}")
    a(f"v_mul_u32_u24 v{t2}, 384, v{t2}")
    a(f"v_and_b32 v{t3}, 3, v0")
    a(f"v_lshl_add_u32 v{t2}, v{t3}, 3, v{t2}")
    a(f"v_lshrrev_b32 v{t1}, 1, v{t1}")
    a(f"v_and_b32 v{t3}, 1, v{t0}")
    a(f"v_lshl_add_u32 v{t1}, v{t3}, 1, v{t1}")
    a(f"v_lshl_add_u32 v{vTR}, v{t1}, 5, v{t2}")
    for k in range(1, 4): a(f"v_xor_b32 v{vTR+k}, {32*k}, v{vTR}")
    if dwdma:
        a(f"s_lshl_b32 s{sTmp}, s{sW}, 10"); a(f"s_add_u32 s{sTmp}, s{sTmp}, {DWL}"); a(f"v_lshl_add_u32 v1, v{t0}, 4, s{sTmp}")
    a(f"s_mov_b32 s{sMask}, 0xffff0000")
    a(f"s_mov_b32 s{sSlot}, 6144")
    a(f"s_mov_b32 s{sLSlot}, {(dist % D)*6144}")
    a(f"s_mov_b32 s{sT}, 0")
    if numa:
        C("the 8 tiles of a 48 KiB period: 4 have address bit 13 clear at their centre, 4 set; this wave takes the w-th of either kind")
        a(f"v_mul_u32_u24 v{t1}, 6144, v0")
        a(f"s_add_u32 s{sTmp}, s4, 3072")
        a(f"v_add_u32 v{t1}, s{sTmp}, v{t1}")
        a(f"v_and_b32 v{t1}, 0x2000, v{t1}")
        a(f"v_cmp_ne_u32 vcc, 0, v{t1}")
        a(f"s_add_u32 s{sTmp2}, s{sReg}, s4")
        a(f"s_add_u32 s{sReg}, s{sReg}, {KST*PER}")
        a("s_nop 1")
        a(f"s_and_b32 s{sTB}, vcc_lo, 0xff")
        a(f"s_xor_b32 s{sTA}, s{sTB}, 0xff")
        for r in (sTA, sTB):
            for k in range(1, 4):
                a(f"s_sub_u32 s{sTmp}, s{r}, 1"); a(f"s_and_b32 s{sTmp}, s{sTmp}, s{r}")
                a(f"s_cmp_ge_u32 s{sW}, {k}"); a(f"s_cselect_b32 s{r}, s{sTmp}, s{r}")
            a(f"s_ff1_i32_b32 s{r}, s{r}")
            a(f"s_mul_i32 s{r}, s{r}, 6144")
        for t in range(KST, NT):
            a(f"s_add_u32 s{sTmp}, s{sTmp2}, {t*PER+24576}")
            a(f"s_bitcmp1_b32 s{sTmp}, 21")
            a(f"s_cselect_b32 s{OFF+t}, s{sTB}, s{sTA}")
        a(f"s_xor_b32 s{sTA}, s{sTA}, s{sTB}")
    def scale_ops(kk):
        T = vT + 8*(kk & 1); ops = []
        for d in range(4):
            ops.append(f"v_lshlrev_b32 v{T+2*d}, 16, v{R+4*kk+d}")
            ops.append(f"v_and_b32 v{T+2*d+1}, s{sMask}, v{R+4*kk+d}")
        for e in range(8): ops.append(f"v_mul_f32 v{T+e}, v{T+e}, v{DW+8*kk+e}")
        for d in range(4): ops.append(f"v_cvt_pk_bf16_f32 v{BS+4*kk+d}, v{T+2*d}, v{T+2*d+1}")
        return ops
    tag = {}
    def dsop(name, s): return lambda: tag.__setitem__(name, ds.op(s))
    def need(name): return lambda: ds.need(tag[name])
    def cvt_ops(nt):
        acc = ACC + 4*nt; T = vE + 2*(nt % 4)
        return [f"v_cvt_pk_bf16_f32 v{T}, v{acc}, v{acc+1}", f"v_cvt_pk_bf16_f32 v{T+1}, v{acc+2}, v{acc+3}"]
    def dsw(nt): return dsop(("w", nt), f"ds_write_b64 v{vO+(nt&3)}, {vr(vE+2*(nt%4),2)} offset:{128*(nt>>2)}")
    def rread(kk, va, vb): return dsop(("r", kk), f"ds_read_b128 {vr(R+4*kk,4)}, v{va if kk%2==0 else vb} offset:{128*(kk>>1)}")
    def oread(i): return dsop(("o", i), f"ds_read_b128 {vr(OUT+4*i,4)}, v{vL} offset:{1024*i}")
    def store(i, so=OFF-1): return f"buffer_store_dwordx4 {vr(OUT+4*i,4)}, v{vG+i}, s[24:27], s{so} offen offset:{1024*(i%3)} {stflag}"
    def mfma(m):
        kk, nt = m // 12, m % 12; acc = ACC + 4*nt
        a(f"v_mfma_f32_16x16x32_bf16 {vr(acc,4)}, {wreg(nt,kk)}, {vr(BS+4*kk,4)}, {'0' if kk == 0 else vr(acc,4)}")
    def prep0():
        C("tile 0: LDS -> registers, dw -> f32, chunks 0..3 scaled")
        ds.reset()
        if dwdma:
            for kk in range(6): tag[("dw", kk)] = ds.op(f"ds_read_b128 {vr(DWP+4*kk,4)}, v1 offset:{64*kk}")
        for kk in range(6): rread(kk, vB0, vB1)()
        for kk in range(6):
            if dwdma: (ds.need(tag[("dw", kk)]) if not stag else (a("s_waitcnt lgkmcnt(6)") if kk == 0 else None))
            for d in range(4):
                a(f"v_lshlrev_b32 v{DW+8*kk+2*d}, 16, v{DWP+4*kk+d}"); a(f"v_and_b32 v{DW+8*kk+2*d+1}, s{sMask}, v{DWP+4*kk+d}")
        a("s_waitcnt lgkmcnt(0)")
        for kk in range(4): emit(scale_ops(kk))
    def trblock():
        C("pw image -> A operands (transposing reads)")
        for kk in range(6):
            if kk in (2, 4):
                add = RING + 18432 if kk == 2 else 2*RSZ
                for k in range(4): a(f"v_add_u32 v{vTR+k}, {add}, v{vTR+k}")
            boff = 12288*kk if kk < 2 else (kk & 1) * RSZ
            for nt in range(12):
                for u in range(2):
                    a(f"ds_read_b64_tr_b16 {wreg(nt,kk,2*u,2)}, v{vTR+(nt&3)} offset:{boff+4*u*384+128*(nt>>2)}")
    def lateclaim():
        a(f"s_cmp_lg_u32 s{sW}, 0"); a("s_cbranch_scc1 L_nolate"); a(f"s_cmp_lg_u32 s{sBit}, 0"); a("s_cbranch_scc1 L_nolate")
        claim()
        a("L_nolate:")
    if numa == 2 and late == 3: lateclaim()
    if not stag:
        a(f"s_cmp_lg_u32 s{sW}, 0"); a("s_cbranch_scc1 L_w1"); a(f"s_waitcnt vmcnt({vm0.after(('L0','d'))})"); a("L_w1:")
        a(f"s_waitcnt vmcnt({vm1.after(('L0','d'))})")
        prep0()
    if numa == 2 and late == 2: lateclaim()
    if l1 == "mid": xload(vm1, 1)
    C("pw image (and tile 0, dw) landed")
    a(f"s_waitcnt vmcnt({vm1.after(('W',))})")
    STAMP(3)
    a("s_barrier")
    vm = vm1
    if numa == 2 and late == 1: lateclaim()
    n0 = len(vm)
    if l1 == "post": xload(vm, 1)
    xload(vm, 2)
    nrest = sum(c for n, c in vm[n0:])
    if stag:
        C("waves 0,1 read pw first, waves 2,3 prepare tile 0 first (two waves saturate the LDS read path)")
        a(f"s_cmp_lt_u32 s{sW}, 2"); a("s_cbranch_scc1 L_tr")
        a("L_prep:")
        prep0()
        a(f"s_cmp_lt_u32 s{sW}, 2"); a("s_cbranch_scc1 L_ready")
        a("L_tr:")
        trblock()
        a(f"s_cmp_lt_u32 s{sW}, 2"); a("s_cbranch_scc1 L_prep")
        a("L_ready:")
    else:
        trblock()
    if numa:
        C("wave 0 publishes the class this workgroup ended up with")
        a(f"s_cmp_lg_u32 s{sW}, 0"); a("s_cbranch_scc1 L_nopub")
        a(f"s_waitcnt vmcnt({nrest})")
        a(f"v_readfirstlane_b32 s{sTmp}, v{vA}")
        a(f"v_mov_b32 v{t1}, {FLAG}")
        a("s_nop 2")
        a(f"s_and_b32 s{sTmp}, s{sTmp}, s{sBit}")
        a(f"s_cselect_b32 s{sTmp}, 1, 0")
        if stamp: a(f"s_lshl_b32 s86, s{sTmp}, 1"); a(f"s_or_b32 s86, s86, s{sCls}")
        a(f"s_xor_b32 s{sCls}, s{sCls}, s{sTmp}")
        a(f"v_mov_b32 v{t3}, s{sCls}")
        a(f"ds_write_b32 v{t1}, v{t3}")
        a("L_nopub:")
    a("s_waitcnt lgkmcnt(0)")
    a("s_barrier")
    if numa:
        a(f"v_mov_b32 v{t1}, {FLAG}")
        a(f"ds_read_b32 v{t1}, v{t1}")
        a("s_waitcnt lgkmcnt(0)")
        a(f"v_readfirstlane_b32 s{sCls}, v{t1}")
        a("s_nop 3")
        a(f"s_cmp_lg_u32 s{sCls}, 0")
        a(f"s_cselect_b32 s{sTA}, s{sTA}, 0")
        for t in range(KST, NT):
            a(f"s_xor_b32 s{OFF+t}, s{OFF+t}, s{sTA}")
            a(f"s_add_u32 s{OFF+t}, s{OFF+t}, s{sReg}")
            if t < dist: xload(vm, t)
            if t + 1 < NT: a(f"s_add_u32 s{sReg}, s{sReg}, {PER}")
    else:
        for t in range(3, dist): xload(vm, t)
    if deep:
        a("s_mov_b64 vcc, 0"); a(f"s_mul_i32 s61, s{sW}, 6144"); a(f"s_sub_u32 s61, s{sRing}, s61")
    STAMP(4)
    waits = {}
    TP = NT - dist
    for t in range(NT):
        if park and t == TP + 1 and not hack2: vm.append((f"S{t-2}", 6 if na == 6 or park == 2 else 6 - na))
        if hack2 and t == TP + 2: vm.append((f"S{t-2}", 12))
        for _, e in sorted([(17, "w"), (15, "s"), (ldslot, "l")]):
            if e == "w" and t + 1 < NT: waits[t] = vm.after((f"L{t+1}",))
            if na == 6:
                if e == "s" and t > 0 and not (park and (t == TP or hack2 and t == TP + 1)): vm.append((f"S{t-1}", 6))
            else:
                if e == "s" and t > 0 and not (park == 2 and t == TP): vm.append((f"S{t-1}", na))
                if e == "l" and t > 0 and not (park and t == TP): vm.append((f"S{t-1}", 6 - na))
            if e == "l" and t + dist < NT: vm.append((f"L{t+dist}", 6))
    wmax = max(waits.values()); assert wmax <= 63
    wcode = ""
    for k, w in enumerate(sorted(set(waits.values()) - {wmax})):
        mask = sum(1 << t for t, x in waits.items() if x == w)
        wcode += f"s_bitcmp0_b32 {mask:#x}, s{sT}\ns_cbranch_scc1 L_nw{k}\ns_waitcnt vmcnt({w})\nL_nw{k}:\n"
    wcode += f"s_waitcnt vmcnt({wmax})"
    if deep: assert park == 1 and na == 6 and onewait == 12 and not hack2
    if onewait: wcode = f"s_waitcnt vmcnt({min(waits.values()) if onewait == 1 else onewait})"
    C("---- iteration t: 72 MFMAs of tile t; in their shadow: output of tile t-1, loads of tile t+%d, operands of tile t+1" % dist)
    a(".p2align 3")
    a("L_loop:")
    ds.reset()
    oth = [[] for _ in range(72)]; val = [[] for _ in range(72)]
    def spread(ops, s0):
        m = s0
        for o in ops:
            while len(val[m]) >= 2: m += 1
            val[m].append(o)
        return m
    oth[0] += [dsw(8)]
    if deep:
        sD = 61
        oth[2] += [f"s_cmp_lt_u32 s{sT}, {TP+1}"]
        post3 = ["s_cbranch_scc1 L_nopark", "s_cbranch_vccnz L_flush", f"s_cmp_lg_u32 s{sT}, {TP+1}", "s_cbranch_scc1 L_nopark",
                 "s_getreg_b32 s60, hwreg(HW_REG_IB_STS)", "s_and_b32 s60, s60, 0xc000000f", "s_cbranch_scc0 L_landed" if deep == 1 else ("s_branch L_landed" if deep == 2 else "s_nop 0"),
                 "s_mov_b64 vcc, -1", "s_branch L_nopark",
                 "L_flush:"] + [store(i, OFF-3) for i in range(6)] + [f"ds_read_b128 {vr(OUT+4*i,4)}, v{vL} offset:{1024*i}" for i in range(6)] + \
                [f"v_add_u32 v{vL}, s{sD}, v{vL}", "s_mov_b64 vcc, 0", "s_waitcnt lgkmcnt(0)", "L_landed:"] + [store(i, OFF-2) for i in range(6)] + ["L_nopark:"]
    elif park:
        oth[2] += [f"s_cmp_lg_u32 s{sT}, {TP+1+hack2}"]
        oth[3] += ["s_cbranch_scc1 L_nopark"] + ([store(i, OFF-3) for i in range(6)] if hack2 else []) + [store(i, OFF-2) for i in range(0 if na == 6 or park == 2 else na, 6)] + ["L_nopark:"]
    for nt in range(9, 12): val[nt - 9] += cvt_ops(nt); oth[nt - 8].append(dsw(nt))
    val[3] += [f"v_add_u32 v{vBa}, s{sSlot}, v{vB0}", f"v_add_u32 v{vBb}, s{sSlot}, v{vB1}"]
    if deep: oth[3] += post3
    if ob: oth[4] += (["s_cbranch_vccnz L_noor"] if deep else []) + [oread(i) for i in range(6)] + (["L_noor:"] if deep else [])
    else:
        for i in range(6): oth[4 + i].append(oread(i))
    oth[10] += [f"s_add_u32 s{sM0}, s{sRing}, s{sLSlot}"]
    pm = 1 | ((1 if park else 0) << TP) | (hack2 << TP + 1)
    oth[13] += LSTAMP(0) + [f"s_bitcmp1_b32 {pm if na == 6 or park == 2 else 1:#x}, s{sT}"]
    oth[14] += [need(("o", 5))]
    oth[15] += ["s_cbranch_scc1 L_nostore"] + (["s_cbranch_vccnz L_nostore"] if deep else []) + (([f"s_cmp_gt_u32 s{sT}, {ntk}", "s_cbranch_scc1 L_st2"] + [store(i).replace(stflag, ntf) for i in range(6)] + ["s_branch L_nostore", "L_st2:"]) if ntk else []) + [store(i) for i in range(na)] + ["L_nostore:"]
    if deep: oth[28] += ["s_cbranch_vccz L_nomove"] + [f"v_add_u32 v{vO+k}, s{sD}, v{vO+k}" for k in range(4)] + ["L_nomove:"]
    assert ldslot in (12, 16) or 18 <= ldslot <= 60
    if na == 6:
        oth[ldslot if ldslot == 16 else ldslot - 1] += [f"s_cmp_lt_u32 s{sT}, {NT-dist}"]
        oth[ldslot] += ["s_cbranch_scc0 L_noload"] + (["s_barrier"] if not barfrom else [f"s_cmp_lt_u32 s{sT}, {barfrom}", "s_cbranch_scc1 L_nobar", "s_barrier", "L_nobar:"]) + dma_ops("s[12:15]", vG, OFF+dist, sM0, 0, ldflag) + ["L_noload:"]
    else:
        if bpos == 1:
            oth[ldslot-2] += [f"s_cmp_lt_u32 s{sT}, {NT-dist}"]
            oth[ldslot-1] += ["s_cbranch_scc0 L_nobar", "s_barrier", "L_nobar:", f"s_bitcmp1_b32 {pm:#x}, s{sT}"]
        else:
            oth[ldslot-1] += [f"s_bitcmp1_b32 {pm:#x}, s{sT}"]
        oth[ldslot] += ["s_cbranch_scc1 L_nostore2"] + [store(i) for i in range(na, 6)] + ["L_nostore2:", f"s_cmp_lt_u32 s{sT}, {NT-dist}", "s_cbranch_scc0 L_noload"]
        oth[ldslot] += (["s_barrier"] if bpos == 2 else []) + dma_ops("s[12:15]", vG, OFF+dist, sM0, 0, ldflag) + ["L_noload:"]
    oth[17] = LSTAMP(1) + [wcode] + LSTAMP(2) + oth[17]
    for kk in range(6): oth[17 + kk].insert(len(LSTAMP(1))*2 + 1 if kk == 0 else 0, rread(kk, vBa, vBb))
    m = spread(scale_ops(4) + scale_ops(5), 4)
    assert m == 23
    oth[23].insert(0, need(("r", 0)))
    oth[30].insert(0, need(("r", 5)))
    early = [f"s_add_u32 s{sSlot}, s{sSlot}, 6144", f"s_cmp_lt_u32 s{sSlot}, {RSZ}", f"s_cselect_b32 s{sSlot}, s{sSlot}, 0",
             f"s_add_u32 s{sLSlot}, s{sLSlot}, 6144", f"s_cmp_lt_u32 s{sLSlot}, {RSZ}", f"s_cselect_b32 s{sLSlot}, s{sLSlot}, 0"]
    lateb = [f"s_add_u32 s{sT}, s{sT}, 1"] + [f"s_mov_b32 s{OFF-1+i}, s{OFF+i}" for i in range(-1 - hack2 - (1 if deep else 0), 9)] + [f"s_cmp_lt_u32 s{sT}, {NT}"]
    if ldslot >= 40:
        for i, o in enumerate(early): oth[31 + i].append(o)
        k = ldslot + 1; per = -(-len(lateb) // (72 - k))
        for i, o in enumerate(lateb): oth[k + i // per].append(o)
    else:
        k = max(ldslot + 1, 31)
        for i, o in enumerate(early + lateb): oth[k + i].append(o)
        assert k + len(early + lateb) <= 63
    m = spread(scale_ops(0) + scale_ops(1) + scale_ops(2) + scale_ops(3), 24)
    assert m == 63, m
    for nt in range(9):
        val[63 + nt] += cvt_ops(nt)
        if nt < 8: oth[64 + nt].append(dsw(nt))
    for m in range(72):
        mfma(m); emit(oth[m]); emit(val[m])
    a("s_cbranch_scc1 L_loop")
    C("---- output of the last tile")
    dsw(8)()
    a("s_nop 1")
    for nt in range(9, 12): emit(cvt_ops(nt)); dsw(nt)()
    for i in range(6): oread(i)()
    for i in range(6): ds.need(tag[("o", i)]); a(store(i))
    if stamp:
        STAMP(6)
        a("s_waitcnt vmcnt(0)")
        STAMP(7)
        a("s_load_dwordx2 s[4:5], s[0:1], 40")
        a("s_getreg_b32 s80, hwreg(HW_REG_XCC_ID)"); a("s_getreg_b32 s82, hwreg(HW_REG_HW_ID)")
        a(f"s_mov_b32 s74, s72"); a(f"s_mov_b32 s88, s{sCls}")
        a(f"s_lshl_b32 s3, s2, 2"); a(f"s_add_u32 s3, s3, s{sW}"); a("s_lshl_b32 s3, s3, 6")
        a("s_waitcnt lgkmcnt(0)")
        for i in range(13):
            a(f"v_mov_b32 v1, s{64+2*i}")
            a(f"v_mov_b32 v2, s3")
            a(f"global_store_dword v2, v1, s[4:5] offset:{4*i}")
        if stamp >= 2:
            a("s_lshl_b32 s3, s3, 2"); a("s_add_u32 s3, s3, 0x200000")
            a("v_lshlrev_b32 v2, 2, v0"); a("v_add_u32 v2, s3, v2")
            a("global_store_dword v2, v250, s[4:5]")
    a("L_end:")
    a("s_endpgm")
    if pf:
        C("never executed: keeps the 8 KiB code prefetch inside the section")
        a(".fill 2048, 4, 0xbf810000")
    return wrap(a.text(), NWG, NW*64, LDS, 512, 96 if stamp else 64, accum_offset=256, notes=NOTES)

if __name__ == "__main__":
    kw = dict(x.split("=") for x in sys.argv[2:])
    open(sys.argv[1], "w").write(gen(**kw))
```
